```python
import torch

def _softmax(x, axis=-1):
    return torch.softmax(x, dim=axis)
def _gelu(x):
    return torch.nn.functional.gelu(x, approximate="tanh")
def _silu(x):
    return torch.nn.functional.silu(x)
def _sigmoid(x):
    return torch.sigmoid(x)
def _layernorm(x, axis=-1, eps=1e-5):
    m = x.mean(dim=axis, keepdim=True)
    v = x.var(dim=axis, keepdim=True, unbiased=False)
    return (x - m) / torch.sqrt(v + eps)
def _scatter_add(tgt, idx, src, axis=0):
    return tgt.clone().index_add_(axis, idx, src)
def _segment_sum(src, seg, n):
    out = torch.zeros((n,) + src.shape[1:], dtype=src.dtype)
    return out.index_add_(0, seg, src)
def _pad(x, pw):
    flat = tuple(v for pair in reversed(pw) for v in pair)
    return torch.nn.functional.pad(x, flat)

kernel_name = 'interleave_layers__sliding_block__swiglu_ffn__prompt'

def setup_inputs():

    _w = (lambda a: (lambda t: t.to(torch.bfloat16) if t.is_floating_point() else t)(torch.as_tensor(a)))
    def _A_setup():
        B, S, D = 1, 2048, 512
        return {
            "x": _w((lambda *s: torch.randn(*s, dtype=torch.bfloat16) * 0.05)(B, S, D)),
            "wqkv": _w((lambda *s: torch.randn(*s, dtype=torch.bfloat16) * 0.05)(D, 3 * D)),
            "wo": _w((lambda *s: torch.randn(*s, dtype=torch.bfloat16) * 0.05)(D, D)),
        }
    _A_in = _A_setup()

    def _B_setup():
        B, S, D, F = 1, 2048, 512, 1792
        return {
            "x": _w((lambda *s: torch.randn(*s, dtype=torch.bfloat16) * 0.05)(B, S, D)),
            "w_gate": _w((lambda *s: torch.randn(*s, dtype=torch.bfloat16) * 0.05)(D, F)),
            "w_up": _w((lambda *s: torch.randn(*s, dtype=torch.bfloat16) * 0.05)(D, F)),
            "w_down": _w((lambda *s: torch.randn(*s, dtype=torch.bfloat16) * 0.05)(F, D)),
        }
    _B_in = _B_setup()

    return {
        "A_x": _A_in["x"],
        "A_wqkv": _A_in["wqkv"],
        "A_wo": _A_in["wo"],
        "B_x": _B_in["x"],
        "B_w_gate": _B_in["w_gate"],
        "B_w_up": _B_in["w_up"],
        "B_w_down": _B_in["w_down"],
    }

def reference(A_x, A_wqkv, A_wo, B_x, B_w_gate, B_w_up, B_w_down):
    def _A_ref(x, wqkv, wo):
        B, S, D = x.shape
        H = 32; Dh = D // H; W = 256
        qkv = (lambda x, *d: x.permute(*d))((x @ wqkv).reshape(B, S, 3, H, Dh), 2, 0, 3, 1, 4)
        q, k, v = qkv[0], qkv[1], qkv[2]
        scores = torch.einsum("bhqd,bhkd->bhqk", q, k) * (Dh ** -0.5)
        idx = torch.arange(S)
        mask = (idx[:, None] - idx[None, :] >= 0) & (idx[:, None] - idx[None, :] < W)
        scores = torch.where(mask[None, None], scores, -1e9)
        p = _softmax(scores, axis=-1)
        o = torch.einsum("bhqk,bhkd->bhqd", p, v)
        return (lambda x, *d: x.permute(*d))(o, 0, 2, 1, 3).reshape(B, S, D) @ wo

    def _B_ref(x, w_gate, w_up, w_down):
        g = _silu(x @ w_gate)
        u = x @ w_up
        return (g * u) @ w_down

    x = A_x
    x = x + _A_ref(_layernorm(x, axis=-1), A_wqkv, A_wo)
    x = x + _B_ref(_layernorm(x, axis=-1), B_w_gate, B_w_up, B_w_down)
    x = x + _A_ref(_layernorm(x, axis=-1), A_wqkv, A_wo)
    x = x + _B_ref(_layernorm(x, axis=-1), B_w_gate, B_w_up, B_w_down)
    return x
```

```python
class Asm:
    def __init__(self):
        self.lines = []
        self.vm = []
        self.lg = []
        self.lbl = 0
    def __call__(self, s):
        for l in s.strip("\n").split("\n"):
            self.lines.append("    " + l.strip())
    def label(self, name):
        self.lines.append(name + ":")
    def comment(self, s):
        self.lines.append("    ; " + s)
    def newlabel(self, p="L"):
        self.lbl += 1
        return f"{p}_{self.lbl}"
    def vmem(self, s, tag=None):
        self(s); self.vm.append(tag)
    def lds(self, s, tag=None):
        self(s); self.lg.append(tag)
    def _n_after(self, lst, tags):
        idx = -1
        for i, t in enumerate(lst):
            if t in tags: idx = i
        return (len(lst) - 1 - idx) if idx >= 0 else None
    def wait(self, vm=None, lg=None):
        parts = []
        if vm is not None:
            if vm == "all":
                n = 0 if self.vm else None
            else:
                tags = vm if isinstance(vm, (list, tuple, set)) else [vm]
                n = self._n_after(self.vm, set(tags))
            if n is not None:
                n = min(n, 63)
                parts.append(f"vmcnt({n})")
                self.vm = self.vm[len(self.vm) - n:] if n else []
        if lg is not None:
            if lg == "all":
                n = 0 if self.lg else None
            else:
                tags = lg if isinstance(lg, (list, tuple, set)) else [lg]
                n = self._n_after(self.lg, set(tags))
            if n is not None:
                n = min(n, 15)
                parts.append(f"lgkmcnt({n})")
                self.lg = self.lg[len(self.lg) - n:] if n else []
        if parts:
            self("s_waitcnt " + " ".join(parts))
    stamps_on = False
    def stamp(self):
        if not Asm.stamps_on: return
        i = getattr(self, "nst", 0); self.nst = i + 1
        self("s_waitcnt lgkmcnt(0)")
        self.lg = []
        self(f"s_memtime s[{80+2*i}:{81+2*i}]")
        self("s_waitcnt lgkmcnt(0)")
    def stamp_dump(self, srd, s_w, off, vt0, vt1, st):
        if not Asm.stamps_on: return
        n = getattr(self, "nst", 0)
        self("s_mov_b64 exec, 1")
        self(f"s_lshl_b32 s{st}, s2, 2")
        self(f"s_add_u32 s{st}, s{st}, s{s_w}")
        self(f"s_lshl_b32 s{st}, s{st}, 6")
        self(f"s_add_u32 s{st}, s{st}, {off}")
        self(f"v_mov_b32 v{vt0}, 0")
        for i in range(n):
            self(f"v_mov_b32 v{vt1}, s{80+2*i}")
            self(f"buffer_store_dword v{vt1}, v{vt0}, s[{srd}:{srd+3}], s{st} offen offset:{4*i}")
            self("s_nop 1")
    def text(self):
        return "\n".join(self.lines) + "\n"

def vr(a, n=1):
    return f"v{a}" if n == 1 else f"v[{a}:{a+n-1}]"
def ar(a, n=1):
    return f"a{a}" if n == 1 else f"a[{a}:{a+n-1}]"
def sr(a, n=1):
    return f"s{a}" if n == 1 else f"s[{a}:{a+n-1}]"

def kernel_header(name):
    return f""".globl {name}
.p2align 8
.type {name},@function
{name}:
"""
def kernel_desc(name, vgpr, accum, sgpr=102):
    return f""".p2align 6
.amdhsa_kernel {name}
  .amdhsa_next_free_vgpr {vgpr}
  .amdhsa_next_free_sgpr {sgpr}
  .amdhsa_accum_offset {accum}
  .amdhsa_group_segment_fixed_size 0
  .amdhsa_kernarg_size 80
  .amdhsa_user_sgpr_count 2
  .amdhsa_user_sgpr_kernarg_segment_ptr 1
  .amdhsa_system_sgpr_workgroup_id_x 1
.end_amdhsa_kernel
"""
```

```python
import sys
sys.path.insert(0, "dev")
from asmlib import *

MB = 1 << 20
QF, KF, VT, OF, X1F, X2F, HF = 0, 2*MB, 4*MB, 6*MB, 8*MB, 10*MB, 12*MB
ST1 = 20*MB
ST2 = ST1 + 256*1024
CSQ = ST2 + 256*1024
CSG = CSQ + 8192
STAMP = 21*MB
WOF = 22*MB
WQF = WOF + 512*1024
WDF = 24*MB
WGF = 26*MB
WS_USED = 30*MB

P_X, P_WQKV, P_WO, P_BX, P_WG, P_WU, P_WD, P_OUT, P_DBG, P_WS = 4, 6, 8, 10, 12, 14, 16, 18, 20, 22

def prologue_loads(a):
    a("s_load_dwordx16 s[4:19], s[0:1], 0")
    a("s_load_dwordx4 s[20:23], s[0:1], 64")

def make_srd(a, d, p, nbytes):
    a(f"s_mov_b32 s{d}, s{p}")
    a(f"s_and_b32 s{d+1}, s{p+1}, 0xffff")
    a(f"s_mov_b32 s{d+2}, {nbytes}")
    a(f"s_mov_b32 s{d+3}, 0x00020000")

def gen_proj(name, KS, act_off, wf_off, variants, D=8):
    AK = KS * 4
    D = min(D, KS)
    NR = min(KS, 14)
    a = Asm()
    S_W = 3; S_TT = 28; S_CT = 29; S_T = 30; S_T2 = 31
    SRD_WS = 32; SRD_RES = 40; SRD_OUT = 44
    S_A0 = 48; S_A1 = 49; S_W0 = 50; S_W1 = 51
    S_RESMODE = 52; S_RESOFF = 53; S_OUTMODE = 54; S_OUTOFF = 55; S_STOFF = 56
    S_RB = 57; S_RG = 58; S_OB = 59; S_OG = 60; S_CSJ = 61; S_J = 62
    txt = ""
    anycs = any(v[6] for v in variants)
    for (en, rmode, roff, omode, ooff, stoff, csj) in variants:
        txt += kernel_header(en)
        txt += f"    s_mov_b32 s{S_RESMODE}, {1 if rmode=='rm' else 0}\n"
        txt += f"    s_mov_b32 s{S_RESOFF}, {0 if rmode=='rm' else roff}\n"
        txt += f"    s_mov_b32 s{S_OUTMODE}, {1 if omode=='rm' else 0}\n"
        txt += f"    s_mov_b32 s{S_OUTOFF}, {0 if omode=='rm' else ooff}\n"
        txt += f"    s_mov_b32 s{S_STOFF}, {stoff if stoff is not None else 0}\n"
        txt += f"    s_mov_b32 s{S_CSJ}, {448 if csj else 0}\n"
        txt += f"    s_branch {name}_body\n"
    a.label(f"{name}_body")
    a(f"s_cmp_ge_u32 s2, 256")
    a(f"s_cbranch_scc1 {name}_end")
    a.stamp()
    prologue_loads(a)
    V_LANE = 1; V_T = 2; V_T2 = 3; V_ACTOFF = 4
    V_RESOFF = 8; V_OUTOFF = 9; V_RED = 10; V_RED2 = 11; V_T3 = 12; V_T4 = 13; V_S = 14; V_Q = 15
    V_ACC = 16
    V_RES = 80
    V_SUM = 88
    V_TMP = 104
    V_ONES = 152
    NV = 156
    srd = f"s[{SRD_WS}:{SRD_WS+3}]"
    a(f"v_and_b32 v{V_LANE}, 63, v0")
    a(f"v_lshrrev_b32 v{V_T}, 6, v0")
    a(f"s_and_b32 s{S_T}, s2, 7")
    a(f"v_readfirstlane_b32 s{S_W}, v{V_T}")
    a(f"s_lshr_b32 s{S_T2}, s2, 3")
    a(f"s_and_b32 s{S_TT}, s{S_T}, 3")
    a(f"s_lshl_b32 s{S_TT}, s{S_TT}, 3")
    a(f"s_and_b32 s{S_CT}, s{S_T2}, 7")
    a(f"s_add_u32 s{S_TT}, s{S_TT}, s{S_CT}")
    a(f"s_lshr_b32 s{S_CT}, s{S_T}, 2")
    a(f"s_lshl_b32 s{S_CT}, s{S_CT}, 2")
    a(f"s_lshr_b32 s{S_T2}, s{S_T2}, 3")
    a(f"s_add_u32 s{S_CT}, s{S_CT}, s{S_T2}")
    a(f"v_lshlrev_b32 v{V_ACTOFF}, 4, v{V_LANE}")
    a(f"s_mul_i32 s{S_T}, s{S_W}, {KS*1024}")
    a(f"s_mul_i32 s{S_A0}, s{S_TT}, {2*AK*1024}")
    a(f"s_add_u32 s{S_A0}, s{S_A0}, s{S_T}")
    a(f"s_add_u32 s{S_A0}, s{S_A0}, {act_off}")
    a(f"s_add_u32 s{S_A1}, s{S_A0}, {AK*1024}")
    a(f"s_mul_i32 s{S_W0}, s{S_CT}, {2*AK*1024}")
    a(f"s_add_u32 s{S_W0}, s{S_W0}, s{S_T}")
    a(f"s_add_u32 s{S_W0}, s{S_W0}, {wf_off}")
    a(f"s_add_u32 s{S_W1}, s{S_W0}, {AK*1024}")
    a("s_waitcnt lgkmcnt(0)")
    make_srd(a, SRD_WS, P_WS, WS_USED)
    if anycs:
        a(f"s_lshl_b32 s{S_J}, s2, 1")
        a(f"s_add_u32 s{S_J}, s{S_J}, s{S_W}")
        a(f"s_cmp_ge_u32 s{S_W}, 2")
        a(f"s_cselect_b32 s{S_J}, 0x7fff, s{S_J}")
        lb = a.newlabel(name + "_cs")
        a(f"s_cmp_ge_u32 s{S_J}, s{S_CSJ}")
        a(f"s_cbranch_scc1 {lb}")
        a(f"s_lshl_b32 s{S_T}, s{S_J}, 13")
        a(f"s_add_u32 s{S_T}, s{S_T}, {WGF}")
        a(f"s_add_u32 s{S_T2}, s{S_T}, 4096")
        for i in range(8):
            a(f"buffer_load_dwordx4 {vr(V_TMP+4*i,4)}, v{V_ACTOFF}, {srd}, s{S_T if i < 4 else S_T2} offen offset:{(i%4)*1024}")
        for i in range(4): a(f"v_mov_b32 v{V_ONES+i}, 0x3f803f80")
        a.label(lb)
    def freg(s, i):
        return ar(((s % NR)*4 + i)*4, 4)
    def loads(s):
        if s % 4 == 0 and s > 0:
            for r in (S_W0, S_W1, S_A0, S_A1): a(f"s_add_u32 s{r}, s{r}, 4096")
        for i, r in enumerate((S_W0, S_A0, S_W1, S_A1)):
            idx = (0, 2, 1, 3)[i]
            a.vmem(f"buffer_load_dwordx4 {freg(s, idx)}, v{V_ACTOFF}, {srd}, s{r} offen offset:{(s%4)*1024}", ("f", s, idx))
    for s in range(D): loads(s)
    a.stamp()
    a(f"s_lshr_b32 s{S_T}, s{S_W}, 1")
    a(f"s_lshl_b32 s{S_TT}, s{S_TT}, 1")
    a(f"s_add_u32 s{S_TT}, s{S_TT}, s{S_T}")
    a(f"s_and_b32 s{S_T}, s{S_W}, 1")
    a(f"s_lshl_b32 s{S_CT}, s{S_CT}, 1")
    a(f"s_add_u32 s{S_CT}, s{S_CT}, s{S_T}")
    a(f"v_and_b32 v{V_T}, 31, v{V_LANE}")
    a(f"v_lshrrev_b32 v{V_T2}, 5, v{V_LANE}")
    a(f"v_lshlrev_b32 v{V_T3}, 10, v{V_T}")
    a(f"v_lshl_add_u32 v{V_T3}, v{V_T2}, 4, v{V_T3}")
    def addr_setup(smode, soff, sd, rm_ptr, vout, sbase, sgrp):
        a(f"s_cmp_eq_u32 s{smode}, 1")
        a(f"s_cselect_b32 s{sd}, s{rm_ptr}, s{P_WS}")
        a(f"s_cselect_b32 s{sd+1}, s{rm_ptr+1}, s{P_WS+1}")
        a(f"s_and_b32 s{sd+1}, s{sd+1}, 0xffff")
        a(f"s_cmp_eq_u32 s{smode}, 1")
        a(f"s_cselect_b32 s{sd+2}, {2048*512*2}, s{SRD_WS+2}")
        a(f"s_mov_b32 s{sd+3}, 0x00020000")
        a(f"s_cselect_b64 vcc, -1, 0")
        a(f"s_cselect_b32 s{S_T}, 64, 2048")
        a(f"s_cselect_b32 s{sgrp}, 32, 1024")
        a(f"s_mul_i32 s{S_T}, s{S_T}, s{S_CT}")
        a(f"s_lshl_b32 s{sbase}, s{S_TT}, 15")
        a(f"s_add_u32 s{sbase}, s{sbase}, s{S_T}")
        a(f"s_add_u32 s{sbase}, s{sbase}, s{soff}")
        a(f"s_add_u32 s{sgrp}, s{sgrp}, s{sbase}")
        a(f"v_cndmask_b32 v{vout}, v{V_ACTOFF}, v{V_T3}, vcc")
    addr_setup(S_RESMODE, S_RESOFF, SRD_RES, P_X, V_RESOFF, S_RB, S_RG)
    addr_setup(S_OUTMODE, S_OUTOFF, SRD_OUT, P_OUT, V_OUTOFF, S_OB, S_OG)
    res_issued = False
    def issue_res():
        a.vmem(f"buffer_load_dwordx4 {vr(V_RES,4)}, v{V_RESOFF}, s[{SRD_RES}:{SRD_RES+3}], s{S_RB} offen", "res")
        a.vmem(f"buffer_load_dwordx4 {vr(V_RES+4,4)}, v{V_RESOFF}, s[{SRD_RES}:{SRD_RES+3}], s{S_RG} offen", "res")
    if D >= KS:
        issue_res(); res_issued = True
    for s in range(KS):
        if s == 1 and anycs:
            lb = a.newlabel(name + "_cs")
            a(f"s_cmp_ge_u32 s{S_J}, s{S_CSJ}")
            a(f"s_cbranch_scc1 {lb}")
            cs = vr(V_TMP+32, 16)
            for i in range(8):
                a(f"v_mfma_f32_32x32x16_bf16 {cs}, {vr(V_TMP+4*i,4)}, {vr(V_ONES,4)}, {'0' if i == 0 else cs}")
            a(f"s_and_b32 s{S_T}, s{S_J}, 3")
            a(f"s_mul_i32 s{S_T}, s{S_T}, {3584*4}")
            a(f"s_lshr_b32 s{S_T2}, s{S_J}, 2")
            a(f"s_lshl_b32 s{S_T2}, s{S_T2}, 7")
            a(f"s_add_u32 s{S_T}, s{S_T}, s{S_T2}")
            a(f"s_add_u32 s{S_T}, s{S_T}, {CSG}")
            a(f"v_lshrrev_b32 v{V_T4}, 1, v{V_LANE}")
            a("s_nop 7")
            a("s_mov_b32 exec_lo, 1")
            a("s_mov_b32 exec_hi, 1")
            for g in range(4):
                a(f"buffer_store_dwordx4 {vr(V_TMP+32+4*g,4)}, v{V_T4}, {srd}, s{S_T} offen offset:{32*g}")
            a("s_mov_b64 exec, -1")
            a.label(lb)
        order = [(0, 0), (1, 0), (0, 1), (1, 1)]
        for i, (t, nt) in enumerate(order):
            ti = t + 2*nt
            a.wait(vm=[("f", s, t), ("f", s, 2+nt)])
            acc = vr(V_ACC + ti*16, 16)
            c = "0" if s == 0 else acc
            a(f"v_mfma_f32_32x32x16_bf16 {acc}, {freg(s, t)}, {freg(s, 2+nt)}, {c}")
        if s + D < KS: loads(s + D)
        if not res_issued and s + D >= KS - 1:
            issue_res(); res_issued = True
    a.stamp()
    a(f"s_lshl_b32 s{S_T}, s{S_W}, 14")
    a(f"v_add_u32 v{V_RED}, s{S_T}, v{V_ACTOFF}")
    a(f"s_lshl_b32 s{S_T}, s{S_W}, 12")
    a(f"v_add_u32 v{V_RED2}, s{S_T}, v{V_ACTOFF}")
    a("s_nop 7")
    a("s_nop 1")
    for ti in range(4):
        for i4 in range(4):
            a.lds(f"ds_write_b128 v{V_RED}, {vr(V_ACC + ti*16 + i4*4, 4)} offset:{ti*4096 + i4*1024}", "red")
    a.wait(lg="all")
    a("s_barrier")
    dsts = [V_SUM, V_TMP, V_TMP+16, V_TMP+32]
    for wp in range(4):
        for i4 in range(4):
            a.lds(f"ds_read_b128 {vr(dsts[wp] + i4*4, 4)}, v{V_RED2} offset:{wp*16384 + i4*1024}", ("rr", wp))
    for wp in range(1, 4):
        a.wait(lg=[("rr", wp)])
        for i in range(0, 16, 2):
            a(f"v_pk_add_f32 {vr(V_SUM+i,2)}, {vr(V_SUM+i,2)}, {vr(dsts[wp]+i,2)}")
    a("s_nop 1")
    for g in range(2):
        for i in range(4):
            a(f"v_permlane32_swap_b32 v{V_SUM+8*g+i}, v{V_SUM+8*g+4+i}")
    a.wait(vm="all")
    a.stamp()
    a(f"v_mov_b32 v{V_S}, 0")
    a(f"v_mov_b32 v{V_Q}, 0")
    for g in range(2):
        for j in range(4):
            r = V_RES + 4*g + j
            y0 = V_SUM + 8*g + 2*j
            a(f"v_lshlrev_b32 v{V_T2}, 16, v{r}")
            a(f"v_and_b32 v{V_T3}, 0xffff0000, v{r}")
            a(f"v_add_f32 v{y0}, v{y0}, v{V_T2}")
            a(f"v_add_f32 v{y0+1}, v{y0+1}, v{V_T3}")
            a(f"v_cvt_pk_bf16_f32 v{V_TMP + 4*g + j}, v{y0}, v{y0+1}")
        a(f"buffer_store_dwordx4 {vr(V_TMP+4*g,4)}, v{V_OUTOFF}, s[{SRD_OUT}:{SRD_OUT+3}], s{S_OB if g == 0 else S_OG} offen")
    a(f"s_cmp_eq_u32 s{S_OUTMODE}, 1")
    a(f"s_cbranch_scc1 {name}_fin")
    for i in range(16):
        a(f"v_add_f32 v{V_S}, v{V_S}, v{V_SUM+i}")
        a(f"v_fmac_f32 v{V_Q}, v{V_SUM+i}, v{V_SUM+i}")
    a(f"v_mov_b32 v{V_T2}, v{V_S}")
    a(f"v_mov_b32 v{V_T3}, v{V_Q}")
    a("s_nop 1")
    a(f"v_permlane32_swap_b32 v{V_S}, v{V_T2}")
    a(f"v_permlane32_swap_b32 v{V_Q}, v{V_T3}")
    a(f"v_add_f32 v{V_S}, v{V_S}, v{V_T2}")
    a(f"v_add_f32 v{V_Q}, v{V_Q}, v{V_T3}")
    a(f"s_lshl_b32 s{S_T}, s{S_CT}, 14")
    a(f"s_lshl_b32 s{S_T2}, s{S_TT}, 8")
    a(f"s_add_u32 s{S_T}, s{S_T}, s{S_T2}")
    a(f"s_add_u32 s{S_T}, s{S_T}, s{S_STOFF}")
    a(f"v_lshlrev_b32 v{V_T}, 3, v{V_LANE}")
    a("s_mov_b64 exec, 0xffffffff")
    a(f"buffer_store_dwordx2 v[{V_S}:{V_Q}], v{V_T}, {srd}, s{S_T} offen")
    a.label(f"{name}_fin")
    a.stamp()
    a("s_waitcnt vmcnt(0)") if Asm.stamps_on else None
    a.stamp()
    a.stamp_dump(SRD_WS, S_W, STAMP, V_T, V_T2, S_T)
    a.label(f"{name}_end")
    a("s_endpgm")
    txt += a.text()
    desc = "".join(kernel_desc(v[0], NV + NR*16, NV) for v in variants)
    return txt, desc, 65536

def assemble(parts, launches):
    hdr = open("interleave_layers__sliding_block__swiglu_ffn__prompt.s.ref").read().split("; Override")[0]
    s = hdr
    for (k, g, b, l) in launches:
        s += f"; @launch kernel={k} grid=({g},1,1) block=({b},1,1) lds={l}\n"
    s += '.amdgcn_target "amdgcn-amd-amdhsa--gfx950"\n.text\n'
    for p in parts: s += p[0]
    s += '.section .rodata,"a"\n'
    for p in parts: s += p[1]
    return s

def bf16_round(a, v, t):
    a(f"v_cvt_pk_bf16_f32 v{t}, v{v}, v{v}")
    a(f"v_lshlrev_b32 v{v}, 16, v{t}")

def stats_finish(a, v_s, v_q, v_r, v_rm, t0, t1):
    a(f"v_mul_f32 v{v_s}, {1.0/512!r}, v{v_s}")
    a(f"v_mul_f32 v{v_q}, {1.0/512!r}, v{v_q}")
    a(f"v_fma_f32 v{v_q}, -v{v_s}, v{v_s}, v{v_q}")
    a(f"v_max_f32 v{v_q}, 0, v{v_q}")
    bf16_round(a, v_q, t0)
    a(f"v_add_f32 v{v_q}, 1e-5, v{v_q}")
    bf16_round(a, v_q, t0)
    a(f"v_sqrt_f32 v{v_q}, v{v_q}")
    a("s_nop 0")
    bf16_round(a, v_q, t0)
    a(f"v_rcp_f32 v{v_r}, v{v_q}")
    bf16_round(a, v_s, t0)
    a(f"v_sub_f32 v{v_rm}, 0, v{v_s}")

def gen_qkv(name, first):
    a = Asm()
    S_W = 3; S_RB = 28; S_CT = 29; S_T = 30; S_T2 = 31
    SRD_WS = 32; SRD_W = 36; SRD_X = 40
    S_XO = 44; S_WOFF = 45; S_LDSW = 46; S_TILE = 47
    S_M = 48
    txt = kernel_header(name)
    a(f"s_cmp_ge_u32 s2, 256")
    a(f"s_cbranch_scc1 {name}_end")
    a.stamp()
    prologue_loads(a)
    V_LANE = 1; V_T = 2; V_T2 = 3; V_T3 = 4; V_XOFF = 5; V_DMA = 6
    V_RD = 9; V_RD2 = 10; V_N = 11; V_R = 12; V_RM = 13; V_H = 14; V_L16 = 15
    V_ACC = 16
    V_GRAM = 64; V_SUM = 80; V_CS = 96
    V_WF = 204
    V_ONES = 168
    V_ST = 172
    V_CSV = 188
    V_RV = 204
    V_RMV = 220
    V_PK = 240
    NV = 248
    LDS_X = 98304
    a(f"v_and_b32 v{V_LANE}, 63, v0")
    a(f"v_lshrrev_b32 v{V_T}, 6, v0")
    a(f"s_and_b32 s{S_T}, s2, 7")
    a(f"v_readfirstlane_b32 s{S_W}, v{V_T}")
    a(f"s_lshr_b32 s{S_T2}, s2, 3")
    a(f"s_and_b32 s{S_RB}, s{S_T}, 3")
    a(f"s_lshl_b32 s{S_RB}, s{S_RB}, 2")
    a(f"s_and_b32 s{S_CT}, s{S_T2}, 3")
    a(f"s_add_u32 s{S_RB}, s{S_RB}, s{S_CT}")
    a(f"s_lshr_b32 s{S_CT}, s{S_T}, 2")
    a(f"s_lshl_b32 s{S_CT}, s{S_CT}, 3")
    a(f"s_lshr_b32 s{S_T2}, s{S_T2}, 2")
    a(f"s_add_u32 s{S_CT}, s{S_CT}, s{S_T2}")
    a(f"s_lshl_b32 s{S_TILE}, s{S_RB}, 2")
    a(f"s_add_u32 s{S_TILE}, s{S_TILE}, s{S_W}")
    a(f"v_and_b32 v{V_N}, 31, v{V_LANE}")
    a(f"v_lshrrev_b32 v{V_H}, 5, v{V_LANE}")
    a(f"v_lshlrev_b32 v{V_L16}, 4, v{V_LANE}")
    a(f"s_lshl_b32 s{S_XO}, s{S_TILE}, 15")
    if first:
        a(f"v_lshlrev_b32 v{V_XOFF}, 10, v{V_N}")
        a(f"v_lshl_add_u32 v{V_XOFF}, v{V_H}, 4, v{V_XOFF}")
    else:
        a(f"v_mov_b32 v{V_XOFF}, v{V_L16}")
        a(f"s_add_u32 s{S_XO}, s{S_XO}, {X2F}")
    for i in range(3 if first else 0):
        a(f"v_add_u32 v{V_T}, {64*i}, v{V_LANE}")
        a(f"v_mul_u32_u24 v{V_T2}, 5462, v{V_T}")
        a(f"v_lshrrev_b32 v{V_T2}, 16, v{V_T2}")
        a(f"v_mul_u32_u24 v{V_T3}, 12, v{V_T2}")
        a(f"v_sub_u32 v{V_T}, v{V_T}, v{V_T3}")
        a(f"v_mul_u32_u24 v{V_DMA+i}, 3072, v{V_T2}")
        a(f"v_lshrrev_b32 v{V_T2}, 2, v{V_T}")
        a(f"v_lshl_add_u32 v{V_DMA+i}, v{V_T2}, 10, v{V_DMA+i}")
        a(f"v_and_b32 v{V_T}, 3, v{V_T}")
        a(f"v_lshl_add_u32 v{V_DMA+i}, v{V_T}, 4, v{V_DMA+i}")
    a(f"s_mul_i32 s{S_LDSW}, s{S_W}, {16*192}")
    if first:
        a(f"s_mul_i32 s{S_WOFF}, s{S_W}, {16*3072}")
        a(f"s_lshl_b32 s{S_T}, s{S_CT}, 6")
        a(f"s_add_u32 s{S_WOFF}, s{S_WOFF}, s{S_T}")
        a(f"v_bfe_u32 v{V_T}, v{V_LANE}, 2, 2")
        a(f"v_lshl_add_u32 v{V_T}, v{V_H}, 3, v{V_T}")
        a(f"v_mul_u32_u24 v{V_RD}, 192, v{V_T}")
        a(f"v_bfe_u32 v{V_T}, v{V_LANE}, 4, 1")
        a(f"v_lshl_add_u32 v{V_RD}, v{V_T}, 5, v{V_RD}")
        a(f"v_and_b32 v{V_T}, 3, v{V_LANE}")
        a(f"v_lshl_add_u32 v{V_RD}, v{V_T}, 3, v{V_RD}")
    else:
        a(f"s_lshl_b32 s{S_WOFF}, s{S_CT}, 15")
        a(f"s_lshl_b32 s{S_T}, s{S_W}, 10")
        a(f"s_add_u32 s{S_WOFF}, s{S_WOFF}, s{S_T}")
        a(f"s_add_u32 s{S_WOFF}, s{S_WOFF}, {WQF}")
        a(f"v_mov_b32 v{V_RD}, v{V_L16}")
    a(f"v_add_u32 v{V_RD2}, 49152, v{V_RD}")
    if first:
        for i in range(4): a(f"v_mov_b32 v{V_ONES+i}, 0x3f803f80")
    a("s_waitcnt lgkmcnt(0)")
    make_srd(a, SRD_WS, P_WS, WS_USED)
    make_srd(a, SRD_W, P_WQKV, 512*1536*2)
    if first: make_srd(a, SRD_X, P_X, 2048*512*2)
    xs = SRD_X if first else SRD_WS
    a.stamp()
    def dma(c):
        for i in range(3):
            a(f"s_add_u32 m0, s{S_LDSW}, {c*64*192 + i*1024}")
            if first:
                if i == 0 and c > 0:
                    a(f"s_add_u32 s{S_WOFF}, s{S_WOFF}, {64*3072}")
                else:
                    a("s_nop 0")
                a.vmem(f"buffer_load_dwordx4 v{V_DMA+i}, s[{SRD_W}:{SRD_W+3}], s{S_WOFF} offen lds", ("dma", c))
            else:
                a(f"s_add_u32 s{S_T}, s{S_WOFF}, {i*16*32768 + c*4096}")
                a.vmem(f"buffer_load_dwordx4 v{V_L16}, s[{SRD_WS}:{SRD_WS+3}], s{S_T} offen lds", ("dma", c))
    def xload(s):
        if first:
            a.vmem(f"buffer_load_dwordx4 {ar(s*4,4)}, v{V_XOFF}, s[{xs}:{xs+3}], s{S_XO} offen offset:{s*32}", ("x", s))
        else:
            if s % 4 == 0 and s > 0: a(f"s_add_u32 s{S_XO}, s{S_XO}, 4096")
            a.vmem(f"buffer_load_dwordx4 {ar(s*4,4)}, v{V_XOFF}, s[{xs}:{xs+3}], s{S_XO} offen offset:{(s%4)*1024}", ("x", s))
    PRE = 3
    for c in range(PRE):
        dma(c)
        for s in range(4*c, 4*c+4): xload(s)
    def rd(s, t):
        b = s % 3
        va = V_RD if s < 16 else V_RD2
        if first:
            for jh in range(2):
                a.lds(f"ds_read_b64_tr_b16 {vr(V_WF + (b*3+t)*4 + jh*2, 2)}, v{va} offset:{(s%16)*3072 + t*64 + jh*768}", ("wf", s, t))
        else:
            a.lds(f"ds_read_b128 {vr(V_WF + (b*3+t)*4, 4)}, v{va} offset:{(s%16)*3072 + t*1024}", ("wf", s, t))
    a.stamp()
    a.wait(vm=[("dma", 0)])
    a.stamp()
    a("s_barrier")
    for t in range(3): rd(0, t)
    for t in range(3): rd(1, t)
    for s in range(32):
        b = s % 3
        if s % 8 == 0 and s > 0: a.stamp()
        if s % 4 == 2 and s + 2 < 32:
            a.wait(vm=[("dma", (s+2)//4)])
            a("s_barrier")
        xf = ar(s*4, 4)
        for t in range(3):
            a.wait(vm=[("x", s)], lg=[("wf", s, t)])
            acc = vr(V_ACC + t*16, 16)
            c = "0" if s == 0 else acc
            wf = vr(V_WF + (b*3+t)*4, 4)
            if t < 2:
                a(f"v_mfma_f32_32x32x16_bf16 {acc}, {wf}, {xf}, {c}")
            else:
                a(f"v_mfma_f32_32x32x16_bf16 {acc}, {xf}, {wf}, {c}")
            if s + 2 < 32: rd(s+2, t)
            if t == 0 and s % 4 == 0 and s//4 + PRE < 8: dma(s//4 + PRE)
            if t == 1 and s + 4*PRE < 32: xload(s + 4*PRE)
        if first:
            g = vr(V_GRAM, 16); sm = vr(V_SUM, 16)
            a(f"v_mfma_f32_32x32x16_bf16 {g}, {xf}, {xf}, {'0' if s == 0 else g}")
            a(f"v_mfma_f32_32x32x16_bf16 {sm}, {vr(V_ONES,4)}, {xf}, {'0' if s == 0 else sm}")
            lb = a.newlabel(name + "_cs")
            a(f"s_cmp_lg_u32 s{S_W}, {s % 4}")
            a(f"s_cbranch_scc1 {lb}")
            for t in range(3):
                cs = vr(V_CS + t*16, 16)
                a(f"v_mfma_f32_32x32x16_bf16 {cs}, {vr(V_WF + (b*3+t)*4, 4)}, {vr(V_ONES,4)}, {'0' if s < 4 else cs}")
            a.label(lb)
        elif s == 24:
            a(f"v_lshlrev_b32 v{V_T}, 3, v{V_N}")
            a(f"v_lshl_add_u32 v{V_T}, v{V_H}, 17, v{V_T}")
            a(f"s_lshl_b32 s{S_T}, s{S_TILE}, 8")
            a(f"s_add_u32 s{S_T}, s{S_T}, {ST2}")
            for i in range(8):
                a.vmem(f"buffer_load_dwordx2 {vr(V_ST+2*i,2)}, v{V_T}, s[{SRD_WS}:{SRD_WS+3}], s{S_T} offen", "st")
                if i < 7: a(f"s_add_u32 s{S_T}, s{S_T}, 16384")
            a(f"v_lshlrev_b32 v{V_T3}, 4, v{V_H}")
            a(f"v_lshlrev_b32 v{V_T}, 2, v{V_N}")
            a(f"s_mul_i32 s{S_T}, s{S_CT}, 384")
            a(f"s_add_u32 s{S_T}, s{S_T}, {CSQ}")
            for t in range(2):
                for g in range(4):
                    a.vmem(f"buffer_load_dwordx4 {vr(V_GRAM+16*t+4*g,4)}, v{V_T3}, s[{SRD_WS}:{SRD_WS+3}], s{S_T} offen offset:{t*128 + g*32}", "cv")
            a.vmem(f"buffer_load_dword v{V_CS}, v{V_T}, s[{SRD_WS}:{SRD_WS+3}], s{S_T} offen offset:256", "cv")
    a.stamp()
    if first:
        for k, bit in enumerate((0, 1, 3, 4)):
            a(f"v_and_b32 v{V_T}, {1<<bit}, v{V_N}")
            a(f"v_cmp_ne_u32 s[{S_M+2*k}:{S_M+2*k+1}], 0, v{V_T}")
        a("s_nop 7")
        a("s_nop 3")
        for i in range(8):
            a(f"v_cndmask_b32 v{V_ST+i}, v{V_GRAM+2*i}, v{V_GRAM+2*i+1}, s[{S_M}:{S_M+1}]")
        for i in range(4):
            a(f"v_cndmask_b32 v{V_ST+i}, v{V_ST+2*i}, v{V_ST+2*i+1}, s[{S_M+2}:{S_M+3}]")
        for i in range(2):
            a(f"v_cndmask_b32 v{V_ST+i}, v{V_ST+2*i}, v{V_ST+2*i+1}, s[{S_M+4}:{S_M+5}]")
        a(f"v_cndmask_b32 v{V_ST}, v{V_ST}, v{V_ST+1}, s[{S_M+6}:{S_M+7}]")
        a(f"v_mov_b32 v{V_ST+1}, v{V_ST}")
        a(f"v_and_b32 v{V_T}, 4, v{V_N}")
        a(f"v_cmp_ne_u32 vcc, 0, v{V_T}")
        a(f"v_permlane32_swap_b32 v{V_ST}, v{V_ST+1}")
        a("s_nop 1")
        a(f"v_cndmask_b32 v{V_ST+1}, v{V_ST}, v{V_ST+1}, vcc")
        a(f"v_mov_b32 v{V_ST}, v{V_SUM}")
        a(f"s_mul_i32 s{S_T}, s{S_W}, 384")
        a(f"v_lshlrev_b32 v{V_T}, 4, v{V_H}")
        a(f"v_add_u32 v{V_T}, s{S_T}, v{V_T}")
        a(f"v_add_u32 v{V_T}, {LDS_X}, v{V_T}")
        a("s_mov_b32 exec_lo, 1")
        a("s_mov_b32 exec_hi, 1")
        for t in range(3):
            for g in range(4):
                a.lds(f"ds_write_b128 v{V_T}, {vr(V_CS + t*16 + g*4, 4)} offset:{t*128 + g*32}", "csw")
        a("s_mov_b64 exec, -1")
    else:
        a.wait(vm="st")
        for i in range(1, 8):
            a(f"v_pk_add_f32 {vr(V_ST,2)}, {vr(V_ST,2)}, {vr(V_ST+2*i,2)}")
        a(f"v_mov_b32 v{V_ST+2}, v{V_ST}")
        a(f"v_mov_b32 v{V_ST+3}, v{V_ST+1}")
        a("s_nop 1")
        a(f"v_permlane32_swap_b32 v{V_ST}, v{V_ST+2}")
        a(f"v_permlane32_swap_b32 v{V_ST+1}, v{V_ST+3}")
        a(f"v_pk_add_f32 {vr(V_ST,2)}, {vr(V_ST,2)}, {vr(V_ST+2,2)}")
    stats_finish(a, V_ST, V_ST+1, V_R, V_RM, V_T, V_T2)
    a(f"s_lshl_b32 s{S_T}, s{S_W}, 8")
    a(f"s_add_u32 s{S_T}, s{S_T}, {LDS_X + 2048}")
    a(f"v_lshl_add_u32 v{V_T}, v{V_N}, 2, s{S_T}")
    a.lds(f"ds_write_b32 v{V_T}, v{V_R}", "rw")
    a.lds(f"ds_write_b32 v{V_T}, v{V_RM} offset:128", "rw")
    a(f"v_lshl_add_u32 v{V_T}, v{V_H}, 4, s{S_T}")
    for g in range(4):
        a.lds(f"ds_read_b128 {vr(V_RV+4*g,4)}, v{V_T} offset:{g*32}", "rr")
        a.lds(f"ds_read_b128 {vr(V_RMV+4*g,4)}, v{V_T} offset:{128 + g*32}", "rr")
    if first:
        a.wait(lg="all")
        a("s_barrier")
        a(f"v_lshlrev_b32 v{V_T}, 2, v0")
        a(f"v_cmp_gt_u32 vcc, 96, v0")
        a(f"s_and_saveexec_b64 s[{S_M}:{S_M+1}], vcc")
        lb = a.newlabel(name + "_csf")
        a(f"s_cbranch_execz {lb}")
        a(f"v_add_u32 v{V_T2}, {LDS_X}, v{V_T}")
        for i in range(4):
            a(f"ds_read_b32 v{V_ST+i}, v{V_T2} offset:{i*384}")
        a("s_waitcnt lgkmcnt(0)")
        a(f"v_add_f32 v{V_ST}, v{V_ST}, v{V_ST+1}")
        a(f"v_add_f32 v{V_ST+2}, v{V_ST+2}, v{V_ST+3}")
        a(f"v_add_f32 v{V_ST}, v{V_ST}, v{V_ST+2}")
        a(f"ds_write_b32 v{V_T2}, v{V_ST} offset:1536")
        a(f"s_cmp_lg_u32 s{S_RB}, 0")
        a(f"s_cbranch_scc1 {lb}")
        a(f"s_mul_i32 s{S_T}, s{S_CT}, 384")
        a(f"s_add_u32 s{S_T}, s{S_T}, {CSQ}")
        a(f"buffer_store_dword v{V_ST}, v{V_T}, s[{SRD_WS}:{SRD_WS+3}], s{S_T} offen")
        a.label(lb)
        a(f"s_mov_b64 exec, s[{S_M}:{S_M+1}]")
        a("s_waitcnt lgkmcnt(0)")
        a("s_barrier")
    a.stamp()
    a(f"s_lshl_b32 s{S_T}, s{S_CT}, 17")
    a(f"s_lshl_b32 s{S_T2}, s{S_TILE}, 10")
    a(f"s_add_u32 s{S_XO}, s{S_T}, s{S_T2}")
    a(f"v_lshlrev_b32 v{V_T3}, 4, v{V_H}")
    if first:
        a(f"v_add_u32 v{V_T2}, {LDS_X + 1536}, v{V_T3}")
        for t in range(2):
            for g in range(4):
                a.lds(f"ds_read_b128 {vr(V_GRAM+16*t+4*g,4)}, v{V_T2} offset:{t*128 + g*32}", "cv")
        a(f"v_lshlrev_b32 v{V_T}, 2, v{V_N}")
        a(f"v_add_u32 v{V_T2}, {LDS_X + 1536 + 256}, v{V_T}")
        a.lds(f"ds_read_b32 v{V_CS}, v{V_T2}", "cv")
    a.wait(vm="cv", lg="all")
    for t in range(2):
        acc = V_ACC + t*16
        for i in range(0, 16, 2):
            a(f"v_pk_fma_f32 {vr(acc+i,2)}, {vr(V_GRAM+16*t+i,2)}, {vr(V_R,2)}, {vr(acc+i,2)} op_sel:[0,1,0] op_sel_hi:[1,1,1]")
            a(f"v_pk_mul_f32 {vr(acc+i,2)}, {vr(acc+i,2)}, {vr(V_R,2)} op_sel_hi:[1,0]")
        for hh in range(2):
            for j in range(4):
                a(f"v_cvt_pk_bf16_f32 v{V_PK+4*hh+j}, v{acc+8*hh+2*j}, v{acc+8*hh+2*j+1}")
        a("s_nop 1")
        for hh in range(2):
            a(f"v_permlane32_swap_b32 v{V_PK+4*hh}, v{V_PK+4*hh+2}")
            a(f"v_permlane32_swap_b32 v{V_PK+4*hh+1}, v{V_PK+4*hh+3}")
        a(f"s_add_u32 s{S_T}, s{S_XO}, {QF if t == 0 else KF}")
        a(f"s_add_u32 s{S_T2}, s{S_T}, 65536")
        a.vmem(f"buffer_store_dwordx4 {vr(V_PK,4)}, v{V_L16}, s[{SRD_WS}:{SRD_WS+3}], s{S_T} offen", "o")
        a.vmem(f"buffer_store_dwordx4 {vr(V_PK+4,4)}, v{V_L16}, s[{SRD_WS}:{SRD_WS+3}], s{S_T2} offen", "o")
        a("s_nop 1")
    acc = V_ACC + 32
    for i in range(0, 16, 2):
        a(f"v_pk_fma_f32 {vr(acc+i,2)}, {vr(V_RMV+i,2)}, {vr(V_CS,2)}, {vr(acc+i,2)} op_sel_hi:[1,0,1]")
        a(f"v_pk_mul_f32 {vr(acc+i,2)}, {vr(acc+i,2)}, {vr(V_RV+i,2)}")
    for j in range(8):
        a(f"v_cvt_pk_bf16_f32 v{V_PK+j}, v{acc+2*j}, v{acc+2*j+1}")
    a(f"v_lshrrev_b32 v{V_T}, 4, v{V_N}")
    a(f"v_lshlrev_b32 v{V_T}, 16, v{V_T}")
    a(f"v_lshl_add_u32 v{V_T}, v{V_H}, 8, v{V_T}")
    a(f"v_and_b32 v{V_T2}, 15, v{V_N}")
    a(f"v_lshl_add_u32 v{V_T}, v{V_T2}, 4, v{V_T}")
    a(f"s_add_u32 s{S_T}, s{S_XO}, {VT}")
    a(f"buffer_store_dwordx4 {vr(V_PK,4)}, v{V_T}, s[{SRD_WS}:{SRD_WS+3}], s{S_T} offen")
    a(f"buffer_store_dwordx4 {vr(V_PK+4,4)}, v{V_T}, s[{SRD_WS}:{SRD_WS+3}], s{S_T} offen offset:512")
    a.stamp()
    a("s_waitcnt vmcnt(0)") if Asm.stamps_on else None
    a.stamp()
    a.stamp_dump(SRD_WS, S_W, STAMP, V_T, V_T2, S_T)
    a.label(f"{name}_end")
    a("s_endpgm")
    txt += a.text()
    return txt, kernel_desc(name, NV + 128, NV), 98304 + 4096

NEG = "0xf149f2ca"
def gen_attn(name, side):
    a = Asm()
    S_W = 3; S_HEAD = 28; S_QT = 29; S_T = 30; S_T2 = 31
    SRD_WS = 32
    S_KB = 36; S_VB = 37; S_C = 38; S_EX = 40
    S_M = 42
    txt = kernel_header(name)
    a(f"s_cmp_ge_u32 s2, 512")
    a(f"s_cbranch_scc1 {name}_end")
    prologue_loads(a)
    V_LANE = 1; V_T = 2; V_T2 = 3; V_L16 = 4; V_VOFF = 5; V_D = 6; V_MX = 7; V_MX2 = 8; V_NEG = 9; V_MC = 10; V_H = 11; V_N = 12
    V_S = 16
    V_K = 160
    V_V = 196
    V_Q = 232
    V_O = 236
    NV = 252
    def vfrag(f):
        return V_V + 4*f if f < 9 else V_K + 4*(f-9)
    a(f"v_and_b32 v{V_LANE}, 63, v0")
    a(f"v_lshrrev_b32 v{V_T}, 6, v0")
    a(f"s_and_b32 s{S_T}, s2, 7")
    a(f"v_readfirstlane_b32 s{S_W}, v{V_T}")
    a(f"s_lshr_b32 s{S_T2}, s2, 3")
    a(f"s_lshl_b32 s{S_HEAD}, s{S_T}, 2")
    a(f"s_and_b32 s{S_T}, s{S_T2}, 3")
    a(f"s_add_u32 s{S_HEAD}, s{S_HEAD}, s{S_T}")
    a(f"s_and_b32 s{S_QT}, s{S_T2}, 0xfc")
    a(f"s_add_u32 s{S_QT}, s{S_QT}, s{S_W}")
    a(f"v_lshlrev_b32 v{V_L16}, 4, v{V_LANE}")
    a(f"v_and_b32 v{V_N}, 31, v{V_LANE}")
    a(f"v_lshrrev_b32 v{V_H}, 5, v{V_LANE}")
    a(f"v_lshlrev_b32 v{V_VOFF}, 4, v{V_N}")
    a(f"v_lshl_add_u32 v{V_VOFF}, v{V_H}, 8, v{V_VOFF}")
    a(f"s_lshl_b32 s{S_KB}, s{S_HEAD}, 16")
    a(f"s_mov_b32 s{S_EX}, 0x0000ffff")
    a(f"s_mov_b32 s{S_EX+1}, 0x0000ffff")
    for f in range(9):
        for i in range(4): a(f"v_mov_b32 v{V_V+4*f+i}, 0x3f803f80")
    a("s_waitcnt lgkmcnt(0)")
    make_srd(a, SRD_WS, P_WS, WS_USED)
    srd = f"s[{SRD_WS}:{SRD_WS+3}]"
    a(f"s_lshl_b32 s{S_T}, s{S_QT}, 10")
    a(f"s_add_u32 s{S_T}, s{S_T}, s{S_KB}")
    a.vmem(f"buffer_load_dwordx4 {vr(V_Q,4)}, v{V_L16}, {srd}, s{S_T} offen offset:{QF}" if QF < 4096 else "", "q")
    for j in range(9):
        a(f"s_sub_i32 s{S_T}, s{S_QT}, {8-j}")
        a(f"s_max_i32 s{S_T}, s{S_T}, 0")
        a(f"s_lshl_b32 s{S_T}, s{S_T}, 10")
        a(f"s_add_u32 s{S_T}, s{S_T}, s{S_KB}")
        a(f"s_add_u32 s{50+j}, s{S_T}, {VT}")
        a(f"s_add_u32 s{S_T}, s{S_T}, {KF}")
        a.vmem(f"buffer_load_dwordx4 {vr(V_K+4*j,4)}, v{V_L16}, {srd}, s{S_T} offen", ("k", j))
    def vload(f):
        a.vmem(f"buffer_load_dwordx4 {vr(vfrag(f),4)}, v{V_VOFF}, {srd}, s{50+f//2} offen offset:{(f%2)*512}", ("v", f))
    a(f"s_mov_b64 exec, s[{S_EX}:{S_EX+1}]")
    for f in range(9): vload(f)
    a("s_mov_b64 exec, -1")
    if side:
        SA = 60; SB = 64; S_G = 68; S_J = 69; S_OA = 70; S_OB = 71; S_STR = 72; S_DST = 73; S_DK = 74; S_TY = 75; S_L = 76; S_K2 = 77; S_CTL = 78
        V_SD = 13; V_SR = 14
        a(f"s_lshl_b32 s{S_G}, s2, 2")
        a(f"s_add_u32 s{S_G}, s{S_G}, s{S_W}")
        a(f"s_lshl_b32 s{S_L}, s{S_W}, 12")
        l_single = a.newlabel(name + "_sj"); l_join = a.newlabel(name + "_sj")
        l_wd = a.newlabel(name + "_sj"); l_wq = a.newlabel(name + "_sj"); l_c = a.newlabel(name + "_sj")
        a(f"s_cmp_ge_u32 s{S_G}, 896")
        a(f"s_cbranch_scc1 {l_single}")
        a(f"s_mul_i32 s{S_K2}, s{S_G}, 2341")
        a(f"s_lshr_b32 s{S_K2}, s{S_K2}, 16")
        a(f"s_mul_i32 s{S_T}, s{S_K2}, 28")
        a(f"s_sub_u32 s{S_CTL}, s{S_G}, s{S_T}")
        make_srd(a, SA, P_WG, 512*1792*2)
        make_srd(a, SB, P_WU, 512*1792*2)
        a(f"s_mov_b32 s{S_STR}, 3584")
        a(f"s_mul_i32 s{S_OA}, s{S_K2}, {16*3584}")
        a(f"s_lshl_b32 s{S_T}, s{S_CTL}, 7")
        a(f"s_add_u32 s{S_OA}, s{S_OA}, s{S_T}")
        a(f"s_mov_b32 s{S_OB}, s{S_OA}")
        a(f"s_lshl_b32 s{S_DST}, s{S_CTL}, 17")
        a(f"s_lshl_b32 s{S_T}, s{S_K2}, 10")
        a(f"s_add_u32 s{S_DST}, s{S_DST}, s{S_T}")
        a(f"s_add_u32 s{S_DST}, s{S_DST}, {WGF}")
        a(f"s_mov_b32 s{S_TY}, 0")
        a(f"s_branch {l_join}")
        a.label(l_single)
        a(f"s_sub_u32 s{S_J}, s{S_G}, 896")
        a(f"s_cmp_ge_u32 s{S_J}, 960")
        a(f"s_cselect_b32 s{S_T}, 960, 0")
        a(f"s_sub_u32 s{S_J}, s{S_J}, s{S_T}")
        a(f"s_cmp_ge_u32 s{S_J}, 576")
        a(f"s_cbranch_scc1 {l_wq}")
        a(f"s_cmp_ge_u32 s{S_J}, 128")
        a(f"s_cbranch_scc1 {l_wd}")
        make_srd(a, SA, P_WO, 512*512*2)
        a(f"s_mov_b32 s{S_DST}, {WOF}")
        a(f"s_mov_b32 s{S_DK}, 32")
        a(f"s_lshr_b32 s{S_K2}, s{S_J}, 3")
        a(f"s_and_b32 s{S_CTL}, s{S_J}, 7")
        a(f"s_mov_b32 s{S_STR}, 1024")
        a(f"s_branch {l_c}")
        a.label(l_wd)
        a(f"s_sub_u32 s{S_J}, s{S_J}, 128")
        make_srd(a, SA, P_WD, 1792*512*2)
        a(f"s_mov_b32 s{S_DST}, {WDF}")
        a(f"s_mov_b32 s{S_DK}, 112")
        a(f"s_lshr_b32 s{S_K2}, s{S_J}, 3")
        a(f"s_and_b32 s{S_CTL}, s{S_J}, 7")
        a(f"s_mov_b32 s{S_STR}, 1024")
        a(f"s_branch {l_c}")
        a.label(l_wq)
        a(f"s_sub_u32 s{S_J}, s{S_J}, 576")
        make_srd(a, SA, P_WQKV, 512*1536*2)
        a(f"s_mov_b32 s{S_DST}, {WQF}")
        a(f"s_mov_b32 s{S_DK}, 32")
        a(f"s_mul_i32 s{S_K2}, s{S_J}, 2731")
        a(f"s_lshr_b32 s{S_K2}, s{S_K2}, 16")
        a(f"s_mul_i32 s{S_T}, s{S_K2}, 24")
        a(f"s_sub_u32 s{S_CTL}, s{S_J}, s{S_T}")
        a(f"s_mov_b32 s{S_STR}, 3072")
        a.label(l_c)
        for i in range(4): a(f"s_mov_b32 s{SB+i}, s{SA+i}")
        a(f"s_mov_b32 s{SB+3}, 0x00020000")
        a(f"s_mul_i32 s{S_OA}, s{S_K2}, s{S_STR}")
        a(f"s_lshl_b32 s{S_OA}, s{S_OA}, 5")
        a(f"s_lshl_b32 s{S_T}, s{S_CTL}, 7")
        a(f"s_add_u32 s{S_OA}, s{S_OA}, s{S_T}")
        a(f"s_lshl_b32 s{S_T}, s{S_STR}, 4")
        a(f"s_add_u32 s{S_OB}, s{S_OA}, s{S_T}")
        a(f"s_mul_i32 s{S_T}, s{S_CTL}, s{S_DK}")
        a(f"s_add_u32 s{S_T}, s{S_T}, s{S_K2}")
        a(f"s_lshl_b32 s{S_T}, s{S_T}, 11")
        a(f"s_add_u32 s{S_DST}, s{S_DST}, s{S_T}")
        a(f"s_lshl_b32 s{S_DK}, s{S_DK}, 10")
        a(f"s_mov_b32 s{S_TY}, 1")
        a.label(l_join)
        a(f"v_lshrrev_b32 v{V_T}, 3, v{V_LANE}")
        a(f"v_mul_lo_u32 v{V_SD}, v{V_T}, s{S_STR}")
        a(f"v_and_b32 v{V_T}, 7, v{V_LANE}")
        a(f"v_lshl_add_u32 v{V_SD}, v{V_T}, 4, v{V_SD}")
        a(f"s_lshl_b32 s{S_T2}, s{S_STR}, 3")
        for i in range(4):
            sd = SA if i < 2 else SB
            so = S_OA if i < 2 else S_OB
            a(f"s_add_u32 m0, s{S_L}, {i*1024}")
            if i % 2: a(f"s_add_u32 s{so}, s{so}, s{S_T2}")
            else: a("s_nop 0")
            a.vmem(f"buffer_load_dwordx4 v{V_SD}, s[{sd}:{sd+3}], s{so} offen lds", "sj")
    a(f"v_lshlrev_b32 v{V_T}, 2, v{V_H}")
    a(f"v_sub_u32 v{V_D}, v{V_N}, v{V_T}")
    a(f"v_mov_b32 v{V_NEG}, {NEG}")
    for i0 in range(0, 16, 4):
        for k in range(4):
            i = i0 + k
            a(f"v_cmp_le_i32 s[{S_M+2*k}:{S_M+2*k+1}], {8*(i//4)+i%4}, v{V_D}")
        for k in range(4):
            i = i0 + k
            a(f"v_cndmask_b32 v{V_S+8*16+i}, v{V_NEG}, 0, s[{S_M+2*k}:{S_M+2*k+1}]")
            a(f"v_cndmask_b32 v{V_S+i}, 0, v{V_NEG}, s[{S_M+2*k}:{S_M+2*k+1}]")
    a("s_nop 1")
    for j in range(9):
        a.wait(vm=["q", ("k", j)])
        acc = vr(V_S+16*j, 16)
        c = acc if j in (0, 8) else "0"
        a(f"v_mfma_f32_32x32x16_bf16 {acc}, {vr(V_K+4*j,4)}, {vr(V_Q,4)}, {c}")
    for f in range(9, 18):
        for i in range(4): a(f"v_mov_b32 v{vfrag(f)+i}, 0x3f803f80")
    a(f"s_mov_b64 exec, s[{S_EX}:{S_EX+1}]")
    for f in range(9, 18): vload(f)
    a("s_mov_b64 exec, -1")
    lb = a.newlabel(name + "_full")
    a(f"s_cmp_ge_u32 s{S_QT}, 8")
    a(f"s_cbranch_scc1 {lb}")
    for j in range(8):
        a(f"s_cmp_ge_u32 s{S_QT}, {8-j}")
        a(f"s_cbranch_scc1 {lb}")
        for i in range(16): a(f"v_mov_b32 v{V_S+16*j+i}, v{V_NEG}")
    a.label(lb)
    a(f"v_max3_f32 v{V_MX}, v{V_S}, v{V_S+1}, v{V_S+2}")
    a(f"v_max3_f32 v{V_MX2}, v{V_S+3}, v{V_S+4}, v{V_S+5}")
    i = 6
    tog = 0
    while i < 144:
        m = V_MX if tog == 0 else V_MX2
        a(f"v_max3_f32 v{m}, v{m}, v{V_S+i}, v{V_S+i+1}")
        i += 2; tog ^= 1
    a(f"v_max_f32 v{V_MX}, v{V_MX}, v{V_MX2}")
    a(f"v_mov_b32 v{V_MX2}, v{V_MX}")
    a(f"s_mov_b32 s{S_C}, {0.25*1.4426950408889634!r}")
    a("s_nop 0")
    a(f"v_permlane32_swap_b32 v{V_MX}, v{V_MX2}")
    a(f"v_max_f32 v{V_MX}, v{V_MX}, v{V_MX2}")
    a(f"v_mul_f32 v{V_MC}, s{S_C}, v{V_MX}")
    for j in range(9):
        b = V_S + 16*j
        for i in range(16):
            a(f"v_fma_f32 v{b+i}, v{b+i}, s{S_C}, -v{V_MC}")
        for i in range(16):
            a(f"v_exp_f32 v{b+i}, v{b+i}")
        for i in range(8):
            a(f"v_cvt_pk_bf16_f32 v{b+i}, v{b+2*i}, v{b+2*i+1}")
        a.wait(vm=[("v", 2*j), ("v", 2*j+1)])
        a("s_nop 0")
        o = vr(V_O, 16)
        a(f"v_mfma_f32_32x32x16_bf16 {o}, {vr(vfrag(2*j),4)}, {vr(b,4)}, {'0' if j == 0 else o}")
        a(f"v_mfma_f32_32x32x16_bf16 {o}, {vr(vfrag(2*j+1),4)}, {vr(b+4,4)}, {o}")
    a(f"s_lshl_b32 s{S_T}, s{S_QT}, 15")
    a(f"s_lshl_b32 s{S_T2}, s{S_HEAD}, 10")
    a(f"s_add_u32 s{S_T}, s{S_T}, s{S_T2}")
    a(f"s_add_u32 s{S_T}, s{S_T}, {OF}")
    a("s_nop 7")
    a("s_nop 1")
    a(f"v_rcp_f32 v{V_T}, v{V_O+8}")
    a("s_nop 0")
    for i in range(8):
        a(f"v_mul_f32 v{V_O+i}, v{V_O+i}, v{V_T}")
    for j in range(4):
        a(f"v_cvt_pk_bf16_f32 v{V_S+j}, v{V_O+2*j}, v{V_O+2*j+1}")
    a("s_nop 1")
    a(f"v_permlane32_swap_b32 v{V_S}, v{V_S+2}")
    a(f"v_permlane32_swap_b32 v{V_S+1}, v{V_S+3}")
    a(f"buffer_store_dwordx4 {vr(V_S,4)}, v{V_L16}, {srd}, s{S_T} offen")
    if side:
        a(f"v_bfe_u32 v{V_T}, v{V_LANE}, 2, 2")
        a(f"v_lshl_add_u32 v{V_T}, v{V_H}, 3, v{V_T}")
        a(f"v_lshlrev_b32 v{V_SR}, 7, v{V_T}")
        a(f"v_and_b32 v{V_T}, 3, v{V_LANE}")
        a(f"v_lshl_add_u32 v{V_SR}, v{V_T}, 3, v{V_SR}")
        a(f"v_add_u32 v{V_SR}, s{S_L}, v{V_SR}")
        a(f"v_bfe_u32 v{V_T}, v{V_LANE}, 4, 1")
        F = V_S + 16
        l1 = a.newlabel(name + "_sj")
        a(f"s_cmp_eq_u32 s{S_TY}, 1")
        a(f"s_cbranch_scc1 {l1}")
        a(f"v_lshl_add_u32 v{V_SR}, v{V_T}, 11, v{V_SR}")
        for t in range(4):
            for jh in range(2):
                a(f"ds_read_b64_tr_b16 {vr(F+4*t+2*jh,2)}, v{V_SR} offset:{32*t + jh*512}")
        a("s_waitcnt lgkmcnt(0)")
        for t in range(4):
            a(f"buffer_store_dwordx4 {vr(F+4*t,4)}, v{V_L16}, {srd}, s{S_DST} offen")
            a(f"s_add_u32 s{S_DST}, s{S_DST}, 32768")
        a("s_endpgm")
        a.label(l1)
        a(f"v_lshl_add_u32 v{V_SR}, v{V_T}, 5, v{V_SR}")
        for x in range(2):
            for t2 in range(2):
                for jh in range(2):
                    a(f"ds_read_b64_tr_b16 {vr(F+4*(2*x+t2)+2*jh,2)}, v{V_SR} offset:{x*2048 + 64*t2 + jh*512}")
        a(f"s_add_u32 s{S_T}, s{S_DST}, s{S_DK}")
        a("s_waitcnt lgkmcnt(0)")
        for x in range(2):
            for t2 in range(2):
                a(f"buffer_store_dwordx4 {vr(F+4*(2*x+t2),4)}, v{V_L16}, {srd}, s{S_DST if t2 == 0 else S_T} offen offset:{x*1024}")
    a.label(f"{name}_end")
    a("s_endpgm")
    txt += a.text()
    return txt, kernel_desc(name, NV, NV), (16384 if side else 0)


def gen_gu(name, passes=(5, 2), PD=40, XD=10, CK=2):
    assert sum(passes) == 7
    a = Asm()
    S_W = 3; S_RB = 28; S_CT = 29; S_T = 30; S_T2 = 31
    SRD_WS = 32
    S_XO = 44; S_WOFF = 45; S_TILE = 47; S_HO = 48; S_LW = 49
    txt = kernel_header(name)
    a(f"s_cmp_ge_u32 s2, 256")
    a(f"s_cbranch_scc1 {name}_end")
    a.stamp()
    prologue_loads(a)
    V_LANE = 1; V_T = 2; V_T2 = 3; V_T3 = 4; V_L16 = 5; V_N = 6; V_H = 7
    V_RD = 8
    V_CSA = 11
    V_R = 12; V_RM = 13; V_C1 = 14; V_IR2 = 15
    V_ACC = 16
    NWF = 8
    V_WF = 128
    V_ST = 160
    V_CS = 176
    V_E = 192
    V_P = 200
    V_PK = 208
    NV = 212
    NSLOT = 152
    LDS_CS = NSLOT*1024
    srd = f"s[{SRD_WS}:{SRD_WS+3}]"
    a(f"v_and_b32 v{V_LANE}, 63, v0")
    a(f"v_lshrrev_b32 v{V_T}, 6, v0")
    a(f"s_and_b32 s{S_T}, s2, 7")
    a(f"v_readfirstlane_b32 s{S_W}, v{V_T}")
    a(f"s_lshr_b32 s{S_T2}, s2, 3")
    a(f"s_and_b32 s{S_RB}, s{S_T}, 1")
    a(f"s_lshl_b32 s{S_RB}, s{S_RB}, 3")
    a(f"s_and_b32 s{S_CT}, s{S_T2}, 7")
    a(f"s_add_u32 s{S_RB}, s{S_RB}, s{S_CT}")
    a(f"s_lshr_b32 s{S_CT}, s{S_T}, 1")
    a(f"s_lshl_b32 s{S_CT}, s{S_CT}, 2")
    a(f"s_lshr_b32 s{S_T2}, s{S_T2}, 3")
    a(f"s_add_u32 s{S_CT}, s{S_CT}, s{S_T2}")
    a(f"s_lshl_b32 s{S_TILE}, s{S_RB}, 2")
    a(f"s_add_u32 s{S_TILE}, s{S_TILE}, s{S_W}")
    a(f"v_and_b32 v{V_N}, 31, v{V_LANE}")
    a(f"v_lshrrev_b32 v{V_H}, 5, v{V_LANE}")
    a(f"v_lshlrev_b32 v{V_L16}, 4, v{V_LANE}")
    a(f"v_mov_b32 v{V_RD}, v{V_L16}")
    a(f"v_add_u32 v{V_RD+1}, 65536, v{V_L16}")
    a(f"v_add_u32 v{V_RD+2}, 131072, v{V_L16}")
    a(f"v_lshlrev_b32 v{V_CSA}, 4, v{V_H}")
    a(f"v_add_u32 v{V_CSA}, {LDS_CS}, v{V_CSA}")
    a(f"s_lshl_b32 s{S_XO}, s{S_TILE}, 15")
    a(f"s_add_u32 s{S_XO}, s{S_XO}, {X1F}")
    a(f"s_mul_i32 s{S_WOFF}, s{S_CT}, {7*32768}")
    a(f"s_add_u32 s{S_WOFF}, s{S_WOFF}, {WGF}")
    a(f"s_mul_i32 s{S_HO}, s{S_TILE}, {112*1024}")
    a(f"s_mul_i32 s{S_T}, s{S_CT}, {7*1024}")
    a(f"s_add_u32 s{S_HO}, s{S_HO}, s{S_T}")
    a(f"s_add_u32 s{S_HO}, s{S_HO}, {HF}")
    a("s_waitcnt lgkmcnt(0)")
    make_srd(a, SRD_WS, P_WS, WS_USED)
    seq = []
    t0 = 0
    pass_of = []
    for p, n in enumerate(passes):
        for s in range(32):
            for t in range(t0, t0+n):
                seq.append((t, s)); pass_of.append(p)
        t0 += n
    NQ = len(seq)
    CKF = 8
    def dma_group(g):
        offs = [seq[4*g+w][0]*32768 + seq[4*g+w][1]*1024 for w in range(4)]
        slot = (4*g) % NSLOT
        d01 = offs[1]-offs[0]; d12 = offs[2]-offs[1]; d23 = offs[3]-offs[2]
        if d01 == d12 == d23:
            a(f"s_mul_i32 s{S_T}, s{S_W}, {d01}")
            a(f"s_add_u32 m0, s{S_LW}, {slot*1024}")
            a(f"s_add_u32 s{S_T}, s{S_T}, {offs[0]}")
        else:
            a(f"s_cmp_eq_u32 s{S_W}, 1")
            a(f"s_mov_b32 s{S_T}, {offs[0]}")
            a(f"s_cselect_b32 s{S_T}, {offs[1]}, s{S_T}")
            a(f"s_cmp_eq_u32 s{S_W}, 2")
            a(f"s_cselect_b32 s{S_T}, {offs[2]}, s{S_T}")
            a(f"s_cmp_eq_u32 s{S_W}, 3")
            a(f"s_cselect_b32 s{S_T}, {offs[3]}, s{S_T}")
            a(f"s_add_u32 m0, s{S_LW}, {slot*1024}")
        a(f"s_add_u32 s{S_T}, s{S_T}, s{S_WOFF}")
        a.vmem(f"buffer_load_dwordx4 v{V_L16}, {srd}, s{S_T} offen lds", ("dma", g))
    def xload(s):
        if s % 4 == 0 and s > 0: a(f"s_add_u32 s{S_XO}, s{S_XO}, 4096")
        a.vmem(f"buffer_load_dwordx4 {ar(s*4,4)}, v{V_L16}, {srd}, s{S_XO} offen offset:{(s%4)*1024}", ("x", s))
    a(f"s_lshl_b32 s{S_LW}, s{S_W}, 10")
    NG = NQ // 4
    n0 = passes[0]
    gi = 0; xi = 0
    while gi*4 < PD or xi < XD:
        if xi < XD and xi*n0 <= gi*4:
            xload(xi); xi += 1
        elif gi*4 < PD:
            dma_group(gi); gi += 1
        else:
            xload(xi); xi += 1
    a.stamp()
    def rd(q):
        slot = q % NSLOT
        off = slot*1024
        a.lds(f"ds_read_b128 {vr(V_WF + (q % NWF)*4, 4)}, v{V_RD + off//65536} offset:{off % 65536}", ("wf", q))
    RDD = NWF - 1
    synced = -1
    def ensure(q):
        nonlocal synced
        if q <= synced: return
        c_end = min(((q // CKF) + 1) * CKF, NQ) - 1
        a.wait(vm=[("dma", g) for g in range(0, c_end//4 + 1)])
        a("s_barrier")
        synced = c_end
    fill = []
    def epilogue(mt):
        acc = V_ACC + 16*mt
        ops = []
        def I(s): ops.append(lambda: a(s))
        for g in range(4):
            ops.append(lambda g=g: a.lds(f"ds_read_b128 {vr(V_CS+4*g,4)}, v{V_CSA} offset:{mt*128 + g*32}", ("cs", mt)))
        ops.append(lambda: a.wait(lg=[("cs", mt)]))
        for i in range(0, 16, 2):
            I(f"v_pk_fma_f32 {vr(acc+i,2)}, {vr(V_CS+i,2)}, {vr(V_R,2)}, {vr(acc+i,2)} op_sel:[0,1,0] op_sel_hi:[1,1,1]")
        for i in range(0, 8, 2):
            I(f"v_pk_mul_f32 {vr(V_E+i,2)}, {vr(acc+i,2)}, {vr(V_C1,2)} op_sel_hi:[1,0]")
        for i in range(8):
            I(f"v_exp_f32 v{V_E+i}, v{V_E+i}")
        for i in range(0, 8, 2):
            I(f"v_pk_mul_f32 {vr(V_P+i,2)}, {vr(acc+i,2)}, {vr(acc+8+i,2)}")
        for i in range(0, 8, 2):
            I(f"v_pk_fma_f32 {vr(V_E+i,2)}, {vr(V_E+i,2)}, {vr(V_C1,2)}, {vr(V_C1,2)} op_sel:[0,1,1] op_sel_hi:[1,1,1]")
        for i in range(8):
            I(f"v_rcp_f32 v{V_E+i}, v{V_E+i}")
        I("s_nop 0")
        for i in range(0, 8, 2):
            I(f"v_pk_mul_f32 {vr(V_P+i,2)}, {vr(V_P+i,2)}, {vr(V_E+i,2)}")
        for j in range(4):
            I(f"v_cvt_pk_bf16_f32 v{V_PK+j}, v{V_P+2*j}, v{V_P+2*j+1}")
        I("s_nop 1")
        I(f"v_permlane32_swap_b32 v{V_PK}, v{V_PK+2}")
        I(f"v_permlane32_swap_b32 v{V_PK+1}, v{V_PK+3}")
        if mt >= 4:
            I(f"s_add_u32 s{S_T2}, s{S_HO}, 4096")
            ops.append(lambda: a.vmem(f"buffer_store_dwordx4 {vr(V_PK,4)}, v{V_L16}, {srd}, s{S_T2} offen offset:{(mt-4)*1024}", "st_h"))
        else:
            ops.append(lambda: a.vmem(f"buffer_store_dwordx4 {vr(V_PK,4)}, v{V_L16}, {srd}, s{S_HO} offen offset:{mt*1024}", "st_h"))
        I("s_nop 1")
        return ops
    ensure(0)
    a.stamp()
    for q in range(RDD):
        ensure(q); rd(q)
    stats_q = n0 * 20
    for q in range(NQ):
        mt, s = seq[q]
        p = pass_of[q]
        if q > 0 and pass_of[q-1] != p:
            a.stamp()
            tprev0 = sum(passes[:p-1])
            for t in range(tprev0, tprev0 + passes[p-1]): fill += epilogue(t)
            delay = 4
        a.wait(vm=[("x", s)] if p == 0 else None, lg=[("wf", q)])
        acc = vr(V_ACC + 16*mt, 16)
        a(f"v_mfma_f32_32x32x16_bf16 {acc}, {vr(V_WF + (q % NWF)*4, 4)}, {ar(s*4,4)}, {'0' if s == 0 else acc}")
        if q + RDD < NQ:
            ensure(q + RDD); rd(q + RDD)
        if gi < NG and gi*4 <= q + PD:
            assert gi*4 + 3 < NSLOT or (gi*4 + 3 - NSLOT) < synced - CKF - RDD
            dma_group(gi); gi += 1
        if xi < 32 and xi*n0 <= q + XD*n0:
            xload(xi); xi += 1
        if q == stats_q:
            a(f"v_lshlrev_b32 v{V_T}, 3, v{V_N}")
            a(f"v_lshl_add_u32 v{V_T}, v{V_H}, 17, v{V_T}")
            a(f"s_lshl_b32 s{S_T}, s{S_TILE}, 8")
            a(f"s_add_u32 s{S_T}, s{S_T}, {ST1}")
            for i in range(8):
                a.vmem(f"buffer_load_dwordx2 {vr(V_ST+2*i,2)}, v{V_T}, {srd}, s{S_T} offen", "st")
                if i < 7: a(f"s_add_u32 s{S_T}, s{S_T}, 16384")
            a(f"v_lshlrev_b32 v{V_T3}, 2, v0")
            a(f"s_mul_i32 s{S_T}, s{S_CT}, {224*4}")
            a(f"s_add_u32 s{S_T}, s{S_T}, {CSG}")
            for i in range(4):
                a.vmem(f"buffer_load_dword v{V_CS+i}, v{V_T3}, {srd}, s{S_T} offen", "csp")
                if i < 3: a(f"s_add_u32 s{S_T}, s{S_T}, {3584*4}")
        if q == stats_q + n0*8:
            a.wait(vm=["st", "csp"])
            a(f"v_add_f32 v{V_CS}, v{V_CS}, v{V_CS+1}")
            a(f"v_add_f32 v{V_CS+2}, v{V_CS+2}, v{V_CS+3}")
            a(f"v_add_f32 v{V_CS}, v{V_CS}, v{V_CS+2}")
            a(f"v_add_u32 v{V_T3}, {LDS_CS}, v{V_T3}")
            a.lds(f"ds_write_b32 v{V_T3}, v{V_CS}", "csw")
            for i in range(1, 8):
                a(f"v_pk_add_f32 {vr(V_ST,2)}, {vr(V_ST,2)}, {vr(V_ST+2*i,2)}")
            a(f"v_mov_b32 v{V_ST+2}, v{V_ST}")
            a(f"v_mov_b32 v{V_ST+3}, v{V_ST+1}")
            a("s_nop 1")
            a(f"v_permlane32_swap_b32 v{V_ST}, v{V_ST+2}")
            a(f"v_permlane32_swap_b32 v{V_ST+1}, v{V_ST+3}")
            a(f"v_pk_add_f32 {vr(V_ST,2)}, {vr(V_ST,2)}, {vr(V_ST+2,2)}")
            stats_finish(a, V_ST, V_ST+1, V_R, V_RM, V_T, V_T2)
            a(f"v_mul_f32 v{V_C1}, {-1.4426950408889634!r}, v{V_R}")
            a(f"v_mul_f32 v{V_IR2}, v{V_ST+1}, v{V_ST+1}")
            a.wait(lg=["csw"])
            cs_written_at = synced
        if fill:
            if delay > 0:
                delay -= 1
            else:
                assert synced > cs_written_at
                remaining_mfma = max(1, sum(1 for qq in range(q+1, NQ) if pass_of[qq] == p))
                k = -(-len(fill) // remaining_mfma)
                k = max(k, 3)
                for _ in range(min(k, len(fill))):
                    fill.pop(0)()
    while fill: fill.pop(0)()
    a.stamp()
    a("s_nop 7")
    a("s_nop 3")
    tprev0 = sum(passes[:-1])
    for t in range(tprev0, 7):
        for op in epilogue(t): op()
    a.stamp()
    a("s_waitcnt vmcnt(0)") if Asm.stamps_on else None
    a.stamp()
    a.stamp_dump(SRD_WS, S_W, STAMP, V_T, V_T2, S_T)
    a.label(f"{name}_end")
    a("s_endpgm")
    txt += a.text()
    return txt, kernel_desc(name, NV + 128, NV), NSLOT*1024 + 1024

def build_all(path, **kw):
    k1 = gen_qkv("k1_kernel", True)
    k6 = gen_qkv("k6_kernel", False)
    k2 = gen_attn("k2_kernel", True)
    k7 = gen_attn("k7_kernel", False)
    k3 = gen_proj("k3", 8, OF, WOF, [("k3a_kernel", "rm", None, "fr", X1F, ST1, True), ("k3b_kernel", "fr", X2F, "fr", X1F, ST1, False)])
    k5 = gen_proj("k5", 28, HF, WDF, [("k5a_kernel", "fr", X1F, "fr", X2F, ST2, False), ("k5b_kernel", "fr", X1F, "rm", None, None, False)])
    k4 = gen_gu("k4_kernel", **kw)
    L = [("k1_kernel", 256, 256, k1[2]), ("k2_kernel", 512, 256, k2[2]), ("k3a_kernel", 256, 256, k3[2]), ("k4_kernel", 256, 256, k4[2]), ("k5a_kernel", 256, 256, k5[2]),
         ("k6_kernel", 256, 256, k6[2]), ("k7_kernel", 512, 256, k7[2]), ("k3b_kernel", 256, 256, k3[2]), ("k4_kernel", 256, 256, k4[2]), ("k5b_kernel", 256, 256, k5[2])]
    open(path, "w").write(assemble([k1, k2, k3, k4, k5, k6, k7], L))

if __name__ == "__main__":
    if len(sys.argv) > 2 and sys.argv[2] == "st": Asm.stamps_on = True
    build_all(sys.argv[1])
```
